```python
import torch

def _softmax(x, axis=-1):
    return torch.softmax(x, dim=axis)
def _gelu(x):
    return torch.nn.functional.gelu(x, approximate="tanh")
def _silu(x):
    return torch.nn.functional.silu(x)
def _sigmoid(x):
    return torch.sigmoid(x)
def _layernorm(x, axis=-1, eps=1e-5):
    m = x.mean(dim=axis, keepdim=True)
    v = x.var(dim=axis, keepdim=True, unbiased=False)
    return (x - m) / torch.sqrt(v + eps)
def _scatter_add(tgt, idx, src, axis=0):
    return tgt.clone().index_add_(axis, idx, src)
def _segment_sum(src, seg, n):
    out = torch.zeros((n,) + src.shape[1:], dtype=src.dtype)
    return out.index_add_(0, seg, src)
def _pad(x, pw):
    flat = tuple(v for pair in reversed(pw) for v in pair)
    return torch.nn.functional.pad(x, flat)

kernel_name = 'gated_mix__linear_kernel_hedgehog__glu_gated_glu__prompt'

def setup_inputs():

    _w = (lambda a: (lambda t: t.to(torch.bfloat16) if t.is_floating_point() else t)(torch.as_tensor(a)))
    def _A_setup():
        B, S, D, H = 1, 2048, 512, 32
        Dh = D // H
        return {
            "x": _w((lambda *s: torch.randn(*s, dtype=torch.bfloat16) * 0.05)(B, S, D)),
            "wqkv": _w((lambda *s: torch.randn(*s, dtype=torch.bfloat16) * 0.8)(D, 3 * D)),
            "w_phi": _w((lambda *s: torch.randn(*s, dtype=torch.bfloat16) * 0.8)(H, Dh, Dh) * (Dh ** -0.5)),
            "wo": _w((lambda *s: torch.randn(*s, dtype=torch.bfloat16) * 0.1)(D, D)),
        }
    _A_in = _A_setup()

    def _B_setup():
        B, S, D, F = 1, 2048, 512, 1792
        return {
            "x": _w((lambda *s: torch.randn(*s, dtype=torch.bfloat16) * 0.05)(B, S, D)),
            "w_gate": _w((lambda *s: torch.randn(*s, dtype=torch.bfloat16) * 0.4)(D, F)),
            "w_up": _w((lambda *s: torch.randn(*s, dtype=torch.bfloat16) * 0.05)(D, F)),
            "w_down": _w((lambda *s: torch.randn(*s, dtype=torch.bfloat16) * 0.05)(F, D)),
        }
    _B_in = _B_setup()

    return {
        "A_x": _A_in["x"],
        "A_wqkv": _A_in["wqkv"],
        "A_w_phi": _A_in["w_phi"],
        "A_wo": _A_in["wo"],
        "B_x": _B_in["x"],
        "B_w_gate": _B_in["w_gate"],
        "B_w_up": _B_in["w_up"],
        "B_w_down": _B_in["w_down"],
        "gate_w": _w((lambda *s: torch.randn(*s, dtype=torch.bfloat16) * 0.05)(512) * 16.0),
    }

def reference(A_x, A_wqkv, A_w_phi, A_wo, B_x, B_w_gate, B_w_up, B_w_down, gate_w):
    def _A_ref(x, wqkv, w_phi, wo):
        B, S, D = x.shape
        H = 32; Dh = D // H
        qkv = (lambda x, *d: x.permute(*d))((x @ wqkv).reshape(B, S, 3, H, Dh), 2, 0, 3, 1, 4)
        q, k, v = qkv[0], qkv[1], qkv[2]
        pq = torch.einsum("bhsd,hdf->bhsf", q, w_phi)
        pk = torch.einsum("bhsd,hdf->bhsf", k, w_phi)
        phi_q = torch.concatenate([_softmax(pq, axis=-1), _softmax(-pq, axis=-1)], axis=-1)
        phi_k = torch.concatenate([_softmax(pk, axis=-1), _softmax(-pk, axis=-1)], axis=-1)
        kv = torch.einsum("bhsf,bhsd->bhfd", phi_k, v)
        z  = torch.einsum("bhsf->bhf", phi_k)
        num = torch.einsum("bhqf,bhfd->bhqd", phi_q, kv)
        den = torch.einsum("bhqf,bhf->bhq", phi_q, z)[..., None] + 1e-6
        o = num / den
        return (lambda x, *d: x.permute(*d))(o, 0, 2, 1, 3).reshape(B, S, D) @ wo

    def _B_ref(x, w_gate, w_up, w_down):
        g = torch.einsum("bsd,df->bsf", x, w_gate)
        u = torch.einsum("bsd,df->bsf", x, w_up)
        h = _sigmoid(g) * u
        return torch.einsum("bsf,fd->bsd", h, w_down)

    x = A_x
    g = _sigmoid((x * gate_w).sum(-1, keepdims=True))
    a = _A_ref(x, A_wqkv, A_w_phi, A_wo)
    b = _B_ref(x, B_w_gate, B_w_up, B_w_down)
    return g * a + (1 - g) * b
```

```python
import re

_REG = re.compile(r'^(-|abs\(|\|)?([vas])(?:(\d+)|\[(\d+):(\d+)\])(\)|\|)?$')


def regs_of(tok):
    tok = tok.strip()
    if tok in ('vcc', 'exec', 'm0', 'scc'):
        return [(tok, 0)]
    if tok in ('vcc_lo', 'vcc_hi'):
        return [('vcc', 0)]
    m = _REG.match(tok)
    if not m:
        return []
    k = m.group(2)
    if m.group(3) is not None:
        return [(k, int(m.group(3)))]
    return [(k, i) for i in range(int(m.group(4)), int(m.group(5)) + 1)]


def split_ops(s):
    out, depth, cur = [], 0, ''
    for ch in s:
        if ch in '[(':
            depth += 1
        if ch in '])':
            depth -= 1
        if ch == ',' and depth == 0:
            out.append(cur.strip())
            cur = ''
        else:
            cur += ch
    if cur.strip():
        out.append(cur.strip())
    return out


TRANS = ('v_exp_f32', 'v_log_f32', 'v_rcp_f32', 'v_rsq_f32', 'v_sqrt_f32', 'v_sin_f32', 'v_cos_f32')


class I:
    def __init__(self, text, tok=None, need=None, extra_rd=None, cmt=None):
        self.text = text
        self.tok = tok
        self.need = need or []
        self.rd, self.wr = set(), set()
        self.srcC, self.srcAB = set(), set()
        self.data = set()
        self.wide = False
        self.dpp = False
        self.cmt = cmt
        self.xrd = set(extra_rd or [])
        self.parse()

    def parse(self):
        t = self.text.strip()
        if t.endswith(':'):
            self.kind = 'label'
            return
        if t == '' or t.startswith(';') or t.startswith('.'):
            self.kind = 'pseudo'
            return
        parts = t.split(None, 1)
        mn = parts[0]
        self.mn = mn
        ops = split_ops(parts[1]) if len(parts) > 1 else []
        mods = []
        if ops:
            last = ops[-1].split()
            ops[-1] = last[0]
            mods = last[1:]
        R = lambda i: set(regs_of(ops[i])) if i < len(ops) else set()
        allr = lambda a: set(r for i in range(a, len(ops)) for r in regs_of(ops[i]))
        if mn == 's_waitcnt':
            self.kind = 'wait'
        elif mn == 's_barrier':
            self.kind = 'barrier'
        elif mn == 's_nop':
            self.kind = 'nop'
            self.n = int(ops[0])
        elif mn.startswith('s_cbranch') or mn == 's_branch':
            self.kind = 'branch'
            if 'vcc' in mn:
                self.rd = {('vcc', 0)}
            if 'scc' in mn:
                self.rd = {('scc', 0)}
        elif mn in ('s_endpgm', 's_setprio', 's_sleep'):
            self.kind = 'salu'
        elif mn.startswith('s_load') or mn in ('s_memrealtime', 's_memtime'):
            self.kind = 'smem'
            self.wr = R(0)
            self.rd = allr(1)
        elif mn.startswith('s_cmp') or mn.startswith('s_bitcmp'):
            self.kind = 'salu'
            self.rd = allr(0)
            self.wr = {('scc', 0)}
        elif mn.startswith('s_'):
            self.kind = 'salu'
            self.wr = R(0)
            self.rd = allr(1)
            if mn.startswith('s_cselect') or mn.startswith('s_addc') or mn.startswith('s_subb'):
                self.rd |= {('scc', 0)}
            if 'saveexec' in mn:
                self.wr |= {('exec', 0)}
            if not (mn.startswith('s_mov') or mn.startswith('s_cselect') or mn.startswith('s_mul') or mn.startswith('s_getpc')):
                self.wr |= {('scc', 0)}
        elif mn.startswith('v_mfma'):
            self.kind = 'mfma32' if '32x32' in mn else 'mfma16'
            self.wr = R(0)
            self.srcAB = R(1) | R(2)
            self.srcC = R(3)
            self.rd = self.srcAB | self.srcC
        elif mn.startswith('v_'):
            base = mn.replace('_e32', '').replace('_e64', '').replace('_dpp', '')
            self.kind = 'trans' if base in TRANS else 'valu'
            self.wr = R(0)
            self.rd = allr(1)
            if 'permlane' in mn:
                self.kind = 'perm'
                self.wr = R(0) | R(1)
                self.rd = R(0) | R(1)
            if mn.startswith('v_fmac') or mn.startswith('v_dot2c'):
                self.rd |= R(0)
            if '_dpp' in mn:
                self.dpp = True
                self.rd |= R(0)
            if mn.startswith('v_readfirstlane') or mn.startswith('v_readlane'):
                self.kind = 'rdlane'
            if mn.startswith('v_dot'):
                self.kind = 'dot'
        elif mn.startswith('ds_read'):
            self.kind = 'dsr'
            self.wr = R(0)
            self.rd = allr(1)
        elif mn.startswith('ds_write'):
            self.kind = 'dsw'
            self.rd = allr(0)
        elif mn.startswith('buffer_load') and 'lds' in mods:
            self.kind = 'dma'
            self.rd = allr(0) | {('m0', 0)}
        elif mn.startswith('buffer_load') or mn.startswith('global_load'):
            self.kind = 'vload'
            self.wr = R(0)
            self.rd = allr(1)
        elif mn.startswith('buffer_store'):
            self.kind = 'vstore'
            self.rd = allr(0)
            self.data = R(0)
            self.wide = 'x4' in mn or 'x3' in mn
        elif mn.startswith('global_store'):
            self.kind = 'vstore'
            self.rd = allr(0)
            self.data = R(1)
            self.wide = 'x4' in mn or 'x3' in mn
        else:
            raise ValueError('unknown instruction: ' + t)

    @property
    def is_valu(self):
        return self.kind in ('valu', 'trans', 'perm', 'rdlane', 'dot')

    @property
    def is_mfma(self):
        return self.kind in ('mfma16', 'mfma32')

    @property
    def is_vmem(self):
        return self.kind in ('dma', 'vload', 'vstore')

    @property
    def is_ds(self):
        return self.kind in ('dsr', 'dsw')

    def states(self):
        if self.kind in ('label', 'pseudo'):
            return 0
        if self.kind == 'nop':
            return self.n + 1
        return 1

    def __repr__(self):
        return self.text


def vgpr(s):
    return set(r for r in s if r[0] in ('v', 'a'))


def sgpr(s):
    return set(r for r in s if r[0] in ('s', 'vcc'))


def need_states(prev, cur):
    n = 0
    if prev.is_mfma:
        big = prev.kind == 'mfma32'
        D = prev.wr
        if cur.is_mfma:
            if D & cur.srcAB:
                n = max(n, 12 if big else 8)
            if D & cur.srcC:
                if not (cur.kind == prev.kind and cur.srcC == D):
                    n = max(n, 10 if big else 6)
            elif D & cur.wr:
                if not (cur.kind == prev.kind and cur.wr == D):
                    n = max(n, 10 if big else 6)
        elif cur.is_valu or cur.is_vmem or cur.is_ds:
            if D & (cur.rd | cur.wr):
                n = max(n, 12 if big else 8)
            if cur.is_valu and prev.srcC & cur.wr:
                n = max(n, 7 if big else 3)
    if prev.is_valu:
        W = vgpr(prev.wr)
        if cur.is_mfma and W & cur.rd:
            n = max(n, 2)
        if cur.kind == 'perm' and W & cur.rd:
            n = max(n, 2)
        if cur.dpp and W & cur.rd:
            n = max(n, 2)
        if cur.kind == 'rdlane' and W & cur.rd:
            n = max(n, 1)
        if prev.kind == 'trans' and cur.is_valu and W & (cur.rd | cur.wr):
            n = max(n, 1)
        if prev.kind == 'dot' and W & (cur.rd | cur.wr):
            if not (cur.kind == 'dot' and cur.mn == prev.mn):
                n = max(n, 3)
        S = sgpr(prev.wr)
        if S:
            if cur.is_valu and S & cur.rd:
                n = max(n, 2)
            if cur.is_vmem and S & cur.rd:
                n = max(n, 5)
            if cur.kind in ('salu', 'branch') and S & cur.rd:
                n = max(n, 1)
    if prev.kind == 'salu' and ('m0', 0) in prev.wr and cur.kind == 'dma':
        n = max(n, 1)
    if prev.kind == 'vstore' and prev.wide and prev.data & cur.wr:
        n = max(n, 2)
    return n


LOOKBACK = 14


def pad_needed(hist, cur):
    need, dist = 0, 0
    for prev in reversed(hist):
        if prev.kind in ('label', 'pseudo'):
            continue
        r = need_states(prev, cur)
        if r > dist:
            need = max(need, r - dist)
        dist += prev.states()
        if dist >= LOOKBACK:
            break
    return need


def hazard_pass(prog):
    out, nn = [], 0
    for ins in prog:
        if ins.kind not in ('label', 'pseudo'):
            p = pad_needed(out, ins)
            if p:
                out.append(I('s_nop %d' % (p - 1)))
                nn += 1
        out.append(ins)
    return out, nn


def wait_pass(prog):
    out = []
    vm, lg = [], []
    nw = 0

    def idx_needed(q, ins):
        best = -1
        touch = ins.rd | ins.wr | ins.xrd
        for i, o in enumerate(q):
            if (o.wr and (o.wr & touch)) or (o.tok is not None and o.tok in ins.need):
                best = i
        return best

    for ins in prog:
        if ins.kind == 'label':
            out.append(ins)
            continue
        if ins.kind == 'wait':
            m = re.search(r'vmcnt\((\d+)\)', ins.text)
            if m:
                n = int(m.group(1))
                vm = vm[len(vm) - n:] if n < len(vm) else vm
                if n == 0:
                    vm = []
            m = re.search(r'lgkmcnt\((\d+)\)', ins.text)
            if m:
                n = int(m.group(1))
                if n == 0:
                    lg = []
                elif not any(o.kind == 'smem' for o in lg):
                    lg = lg[len(lg) - n:] if n < len(lg) else lg
            out.append(ins)
            continue
        parts = []
        i = idx_needed(vm, ins)
        if i >= 0:
            n = min(len(vm) - 1 - i, 63)
            vm = vm[len(vm) - n:] if n else []
            parts.append('vmcnt(%d)' % n)
        i = idx_needed(lg, ins)
        if i >= 0:
            if any(o.kind == 'smem' for o in lg):
                n = 0
            else:
                n = min(len(lg) - 1 - i, 15)
            lg = lg[len(lg) - n:] if n else []
            parts.append('lgkmcnt(%d)' % n)
        if parts:
            out.append(I('s_waitcnt ' + ' '.join(parts)))
            nw += 1
        out.append(ins)
        if ins.is_vmem:
            vm.append(ins)
            if len(vm) > 63:
                out.insert(len(out) - 1, I('s_waitcnt vmcnt(62)'))
                vm = vm[-63:]
        elif ins.is_ds or ins.kind == 'smem':
            lg.append(ins)
    return out, nw


PORT = {'valu': 4, 'perm': 4, 'rdlane': 4, 'dot': 8, 'trans': 8}


class Prog:
    def __init__(self):
        self.ins = []
        self.streams = []
        self.now = 0
        self.ready = {}
        self.DS_LAT = 128
        self.VM_LAT = 1200
        self.slow = []

    def e(self, text, **kw):
        ins = text if isinstance(text, I) else I(text, **kw)
        self.ins.append(ins)
        if ins.kind == 'dsr':
            for r in ins.wr:
                self.ready[r] = self.now + self.DS_LAT
        elif ins.kind == 'vload':
            for r in ins.wr:
                self.ready[r] = self.now + self.VM_LAT
        elif ins.wr:
            for r in ins.wr:
                self.ready.pop(r, None)
        return ins

    def lines(self, text):
        for ln in text.strip().split('\n'):
            ln = ln.split(';')[0].strip()
            if ln:
                self.e(ln)

    def add_stream(self, name, items, front=False):
        items = [x if isinstance(x, (I, list)) else I(x) for x in items]
        if front:
            self.streams.insert(0, [name, items])
        else:
            self.streams.append([name, items])

    def pending(self, name=None):
        return sum(len(s[1]) for s in self.streams if name is None or s[0] == name)

    def _is_ready(self, it):
        first = it[0] if isinstance(it, list) else it
        if pad_needed(self.ins, first):
            return False
        for r in first.rd | first.wr:
            if self.ready.get(r, -1) > self.now:
                return False
        return True

    def fill(self, port, slots, inorder=True):
        while slots > 0:
            took = False
            for s in self.streams:
                if not s[1]:
                    continue
                it = s[1][0]
                its = it if isinstance(it, list) else [it]
                cost = sum(PORT.get(x.kind, 0) for x in its)
                if not self._is_ready(it):
                    continue
                if its[0].is_mfma:
                    s[1].pop(0)
                    self.e(its[0])
                    big = its[0].kind == 'mfma32'
                    self.now += 32 if big else 16
                    port, slots = (24, 7) if big else (8, 3)
                    took = True
                    break
                if cost > port:
                    continue
                s[1].pop(0)
                for x in its:
                    self.e(x)
                port -= cost
                slots -= len(its)
                took = True
                break
            if not took:
                break
        self.streams = [s for s in self.streams if s[1]]

    def flush(self, name=None):
        while True:
            cand = [s for s in self.streams if s[1] and (name is None or s[0] == name or (isinstance(name, (tuple, list)) and s[0] in name))]
            if not cand:
                break
            pick = None
            for s in cand:
                if self._is_ready(s[1][0]):
                    pick = s
                    break
            if pick is None:
                pick = cand[0]
            it = pick[1].pop(0)
            for x in (it if isinstance(it, list) else [it]):
                self.e(x)
                self.now += 32 if x.kind == 'mfma32' else 16 if x.kind == 'mfma16' else max(4, PORT.get(x.kind, 4))
        self.streams = [s for s in self.streams if s[1]]

    def mfma(self, text, others=(), port=8, extra_rd=None, reserve=0):
        self.e(I(text, extra_rd=extra_rd))
        self.now += 16
        slots = 3 - reserve
        for o in others:
            self.e(o)
            k = o.kind if isinstance(o, I) else None
            slots -= 1
            port -= PORT.get(k, 0)
        if slots > 0 and port >= 0:
            self.fill(port, slots)

    def finish(self):
        p, nw = wait_pass(self.ins)
        p, nn = hazard_pass(p)
        return p, nw, nn


def render(prog):
    out = []
    for i in prog:
        if i.kind == 'label':
            out.append(i.text)
        elif i.kind == 'pseudo':
            if i.text.strip():
                out.append('    ' + i.text)
        else:
            out.append('    ' + i.text)
    return '\n'.join(out) + '\n'
```

```python
import sys
from asmfw import *

NAME = 'gated_mix__linear_kernel_hedgehog__glu_gated_glu__prompt_kernel'
OPT = dict(stamps=False, codepf=True)

WS_HF = 0
WS_G = 0x00A00000
WS_FL = 0x00A10000
WS_M1 = 0x00B00000
WS_M2 = 0x00D00000
WS_ST = 0x00E00000
WS_SIZE = 0x01000000
OOB = 0x40000000

BS = 16384
NW = 5
XR0 = 5 * BS
SCR = 9 * BS
LDS_BYTES = 10 * BS

sX, sW1a, sW1b, sW2a, sW2b, sW3a, sW3b = 28, 32, 36, 40, 44, 48, 52
sWDa, sWDb, sWOa, sWOb, sWS, sOUT, sDBG, sPHI = 56, 60, 64, 68, 72, 76, 80, 84
sWAVE, sTG, sCH, sR, sJ, sC, sT2, sN2 = 88, 89, 90, 91, 92, 93, 94, 95
sLDSW = 96
sL2E, sNL2E = 97, 98
sOFF = 99
sT0, sT1 = 100, 101
sJODD = 3
sHFa, sHFb = 4, 5
sXOR1, sXOR2 = 6, 7
sM1, sM1b = 8, 9
sRED = 10
sM2 = 13
sFLG = 14
sP2 = 15
sP2o = 16
sWDo = 17
sWOo = 18
sCNT = 19
sHF2 = 20
sHF3 = 21
sHF1 = 22
sHFO = 23
sGO = 24
sGW = 26
sOFF2 = 25

vL = 0
vQa, vQb, vFa, vFb = 1, 2, 3, 4
vD0, vD1 = 5, 6
vAW = 7
vHF = 11
vM, vS = 12, 13
vPW, vPR = 14, 15
vM1, vM1z = 16, 17
vPA = 18
vPG = 19
vPX = 20
vPD, vPD2, vPD3 = 21, 22, 23
vRED, vM2 = 24, 25
vFL = 26
vFV = 27
vG0 = 28
WB = 32
vWP = 56
ACC0, ACC1 = 64, 128
PHI = 192
LB = 224
ONES = 28


def srd(p, s, lo, hi, add, size):
    if isinstance(add, int):
        if add >= 0:
            p.e(f's_add_u32 s{s}, s{lo}, {add}')
            p.e(f's_addc_u32 s{s+1}, s{hi}, 0')
        else:
            p.e(f's_sub_u32 s{s}, s{lo}, {-add}')
            p.e(f's_subb_u32 s{s+1}, s{hi}, 0')
    else:
        p.e(f's_add_u32 s{s}, s{lo}, {add}')
        p.e(f's_addc_u32 s{s+1}, s{hi}, 0')
    p.e(f's_mov_b32 s{s+2}, {size}')
    p.e(f's_mov_b32 s{s+3}, 0x20000')


def S4(s):
    return f's[{s}:{s+3}]'


def V(a, n=1):
    return f'v{a}' if n == 1 else f'v[{a}:{a+n-1}]'


def A(a, n=4):
    return f'a[{a}:{a+n-1}]'


def emit_all(p, items):
    for x in items:
        for y in (x if isinstance(x, list) else [x]):
            p.e(y)


class Gen:
    def __init__(self, typ):
        self.typ = typ
        self.p = Prog()
        self.npoll = 0
        self.nstamp = 0
        self.wb = 0

    def stamp(self):
        if not OPT['stamps']:
            return
        p = self.p
        k = self.nstamp
        self.nstamp += 1
        p.e('s_memrealtime s[0:1]')
        p.e('s_waitcnt lgkmcnt(0)')
        p.e(f's_lshl_b32 s{sT1}, s2, 9')
        p.e(f's_lshl_b32 s1, s{sWAVE}, 7')
        p.e(f's_add_u32 s{sT1}, s{sT1}, s1')
        p.e(f's_add_u32 s{sT1}, s{sT1}, {WS_ST + 4*k}')
        p.e(f'v_mov_b32 v{vFV}, s0')
        p.e(f'buffer_store_dword v{vFV}, off, {S4(sWS)}, s{sT1}')

    def poll_check(self, data, thr, reload):
        p = self.p
        k = f'{self.typ}{self.npoll}'
        self.npoll += 1
        p.e(f'v_cmp_gt_u32 vcc, {thr}, v{data}')
        p.e(f's_cbranch_vccnz L_slow{k}')
        p.e(f'L_ok{k}:')
        p.slow.append(f'''L_slow{k}:
    s_mov_b32 s{sCNT}, 0
L_loop{k}:
    {reload}
    s_waitcnt vmcnt(0)
    v_cmp_gt_u32 vcc, {thr}, v{data}
    s_nop 1
    s_cbranch_vccz L_ok{k}
    s_add_u32 s{sCNT}, s{sCNT}, 1
    s_cmp_lt_u32 s{sCNT}, 0x40000
    s_cbranch_scc1 L_loop{k}
    s_branch L_ok{k}
''')

    def flag(self, val, need):
        return [[I(f'v_mov_b32 v{vFV}, {val}', need=need),
                 I(f'buffer_store_dword v{vFV}, v{vFL}, {S4(sWS)}, s{sFLG} offen sc1')]]

    def dma_x(self, c):
        slot = c % 4
        it = [I(f's_add_u32 m0, s{sLDSW}, {XR0 + slot*BS}'), I(f's_movk_i32 s{sOFF}, {c*128}')]
        for m in range(4):
            it.append(I(f'buffer_load_dwordx4 v{LB+m}, {S4(sX)}, s{sOFF} offen offset:{1024*m} lds', tok=f'x{c}'))
        return it

    def dma_w(self, gc):
        st, c = self.chunks[gc]
        a, b, va, vb, step = st['srda'], st['srdb'], st['va'], st['vb'], st['kstep']
        it = [I(f's_add_u32 m0, s{sLDSW}, {(gc % NW)*BS}'), I(f's_mov_b32 s{sOFF}, {c*step}')]
        it.append(I(f'buffer_load_dwordx4 v{va}, {S4(a)}, s{sOFF} offen lds', tok=f'w{gc}'))
        it.append(I(f'buffer_load_dwordx4 v{vb}, {S4(a)}, s{sOFF} offen offset:1024 lds', tok=f'w{gc}'))
        it.append(I(f'buffer_load_dwordx4 v{va}, {S4(b)}, s{sOFF} offen offset:2048 lds', tok=f'w{gc}'))
        it.append(I(f'buffer_load_dwordx4 v{vb}, {S4(b)}, s{sOFF} offen offset:3072 lds', tok=f'w{gc}'))
        return it

    P2 = [('f', 0), ('f', 1), ('f', 10), ('f', 11), ('f', 4), ('f', 5), ('f', 8), ('f', 9), ('f', 6), ('f', 7),
          ('f', 2), ('f', 3), ('f', 12), ('f', 13), ('o', 0), ('o', 1), ('o', 2), ('o', 3)]

    def dma_w2(self, i, need=None):
        kind, so = self.P2[i]
        b = self.bslot[i]
        if kind == 'f':
            a, bb, v0, v1, base = sWDa, sWDb, vD0, vD1, sWDo
        else:
            a, bb, v0, v1, base = sWOa, sWOb, self.vO0, self.vO0 + 1, sWOo
        it = [I(f's_add_u32 m0, s{sLDSW}, {b*BS}', need=need or []), I(f's_add_u32 s{sOFF}, s{base}, {so*32768}')]
        it.append(I(f'buffer_load_dwordx4 v{v0}, {S4(a)}, s{sOFF} offen lds', tok=f'd{i}'))
        it.append(I(f'buffer_load_dwordx4 v{v1}, {S4(a)}, s{sOFF} offen offset:1024 lds', tok=f'd{i}'))
        it.append(I(f'buffer_load_dwordx4 v{v0}, {S4(bb)}, s{sOFF} offen offset:2048 lds', tok=f'd{i}'))
        it.append(I(f'buffer_load_dwordx4 v{v1}, {S4(bb)}, s{sOFF} offen offset:3072 lds', tok=f'd{i}'))
        return it

    def load_frags(self, i):
        kind, so = self.P2[i]
        base = sP2 if kind == 'f' else sP2o
        it = [I(f's_add_u32 s{sOFF2}, s{base}, {so*4096}')]
        for t in range(4):
            it.append(I(f'buffer_load_dwordx4 {A(((i % 16)*4 + t)*4)}, v{self.vFR+t}, {S4(sWS)}, s{sOFF2} offen sc1'))
        return it

    def w_reads(self, gc, g, buf):
        st, c = self.chunks[gc]
        mat, a = g >> 1, g & 1
        slot = gc % NW
        hi = slot >= 4
        ar = vAW + a + (2 if hi else 0)
        off0 = slot*BS - (65536 if hi else 0) + mat*2048
        r = WB + 8*buf
        return [I(f'ds_read_b64_tr_b16 {V(r + 4*ks + 2*h, 2)}, v{ar} offset:{off0 + ks*8192 + h*512}')
                for ks in range(2) for h in range(2)]

    def x_reads(self, c):
        slot = c % 4
        out = []
        for i in range(4):
            for ks in range(2):
                ar = PHI + 2*ks + (i >> 1)
                out.append(I(f'ds_read_b128 {A(((2*c + ks)*4 + i)*4)}, v{ar} offset:{slot*BS + (i & 1)*2048}'))
        return out

    def ffn_epi(self, acc, nt, t, sbase):
        G = [acc + ((0*2 + a)*nt + t)*4 + i for a in range(2) for i in range(4)]
        U = [acc + ((1*2 + a)*nt + t)*4 + i for a in range(2) for i in range(4)]
        it = [f'v_mul_f32 v{g}, s{sNL2E}, v{g}' for g in G]
        it += [f'v_exp_f32 v{g}, v{g}' for g in G]
        it += [f'v_add_f32 v{g}, 1.0, v{g}' for g in G]
        it += [f'v_rcp_f32 v{g}, v{g}' for g in G]
        it += [f'v_mul_f32 v{u}, v{u}, v{g}' for g, u in zip(G, U)]
        it += [f'v_cvt_pk_bf16_f32 v{G[0]+k}, v{U[2*k]}, v{U[2*k+1]}' for k in range(4)]
        so = sHFa if t < 2 else sHFb
        it.append(I(f'buffer_store_dwordx4 {V(G[0], 4)}, v{vHF}, {S4(sWS)}, s{so} offen offset:{(t & 1)*1024} sc1', tok=sbase))
        return it

    def hf_setup(self, sbase):
        if self.typ == 'A':
            return [[I(f's_lshl_b32 s{sHFb}, s{sCH}, 11'), I(f's_add_u32 s{sHFa}, s{sbase}, s{sHFb}')],
                    [I(f's_xor_b32 s{sHFb}, s{sHFb}, 2048'), I(f's_add_u32 s{sHFb}, s{sbase}, s{sHFb}')]]
        return [I(f's_mov_b32 s{sHFa}, s{sbase}'), I(f's_add_u32 s{sHFb}, s{sbase}, 2048')]

    def softmax(self, Q, L, wp, out):
        it = [f'v_cvt_pk_bf16_f32 v{Q+k}, v{Q+2*k}, v{Q+2*k+1}' for k in range(4)]
        it += [f'v_permlane16_swap_b32 v{Q}, v{Q+2}', f'v_permlane16_swap_b32 v{Q+1}, v{Q+3}']
        it += [f'v_mfma_f32_32x32x16_bf16 {V(L, 16)}, {V(wp, 4)}, {V(Q, 4)}, 0']
        head = it
        it = [f'v_max3_f32 v{vM}, v{L}, v{L+1}, v{L+2}']
        it += [f'v_max3_f32 v{vM}, v{vM}, v{L+3+2*k}, v{L+4+2*k}' for k in range(6)]
        it += [f'v_max_f32 v{vM}, v{vM}, v{L+15}', f'v_mul_f32 v{vM}, s{sNL2E}, v{vM}']
        it += [f'v_fma_f32 v{L+k}, v{L+k}, s{sL2E}, v{vM}' for k in range(16)]
        it += [f'v_exp_f32 v{L+k}, v{L+k}' for k in range(16)]
        it += [f'v_add_f32 v{vS}, v{L}, v{L+1}']
        it += [f'v_add_f32 v{vS}, v{vS}, v{L+k}' for k in range(2, 16)]
        it += [f'v_rcp_f32 v{vS}, v{vS}']
        it += [f'v_mul_f32 v{L+k}, v{L+k}, v{vS}' for k in range(16)]
        it += [f'v_cvt_pk_bf16_f32 v{out+k}, v{L+2*k}, v{L+2*k+1}' for k in range(8)]
        return head, it

    def k_stream(self):
        units = [(a, P) for a in range(2) for P in range(2)]
        heads, bodies, tails = [], [], []
        for n, (a, P) in enumerate(units):
            K = ACC0 + ((0*2 + a)*4 + 2*P)*4
            Vv = ACC0 + ((1*2 + a)*4 + 2*P)*4
            L = LB + 16*(n & 1)
            h, b = self.softmax(K, L, vWP + 4*a, L)
            b += [f'ds_write_b128 v{vPW}, {V(L, 4)}', f'ds_write_b128 v{vPW}, {V(L+4, 4)} offset:16']
            b += [f'ds_read_b64_tr_b16 {V(K + 4*s + 2*hh, 2)}, v{vPR} offset:{s*1024 + hh*512}' for s in range(2) for hh in range(2)]
            tl = [f'v_cvt_pk_bf16_f32 v{Vv+k}, v{Vv+2*k}, v{Vv+2*k+1}' for k in range(4)]
            D = PHI + 16*a
            for s in range(2):
                c1 = V(D + 4*s, 4) if P else '0'
                c2 = V(D + 8 + 4*s, 4) if P else '0'
                tl += [f'v_mfma_f32_16x16x32_bf16 {V(D + 4*s, 4)}, {V(K + 4*s, 4)}, {V(Vv, 4)}, {c1}',
                       f'v_mfma_f32_16x16x32_bf16 {V(D + 8 + 4*s, 4)}, {V(K + 4*s, 4)}, {V(ONES, 4)}, {c2}']
            heads.append(h); bodies.append(b); tails.append(tl)
        it = heads[0] + heads[1]
        for n in range(4):
            half = len(bodies[n]) // 3
            it += bodies[n][:half]
            if n >= 1:
                it += tails[n-1]
            it += bodies[n][half:]
            if n + 2 < 4:
                it += heads[n+2]
        it += tails[3]
        it += [I(f'ds_write_b128 v{self.vEX}, {V(PHI + 4*k, 4)} offset:{1024*k}', tok='exw') for k in range(4)]
        return it

    def q_stream(self):
        units = [(a, P) for P in range(2) for a in range(2)]
        heads, bodies = [], []
        for n, (a, P) in enumerate(units):
            Q = ACC1 + (a*4 + 2*P)*4
            h, b = self.softmax(Q, LB + 16*(n & 1), vWP + 4*a, PHI + (P*2 + a)*8)
            heads.append(h); bodies.append(b)
        it = heads[0] + heads[1]
        for n in range(4):
            it += bodies[n]
            if n + 2 < 4:
                it += heads[n+2]
        return it

    def g_stream(self):
        X, W = ACC1, ACC1 + 8
        s, t = ACC1 + 16, ACC1 + 17
        it = [f'v_dot2_f32_bf16 v{s}, v{X}, v{W}, 0']
        it += [f'v_dot2_f32_bf16 v{s}, v{X+k}, v{W+k}, v{s}' for k in range(1, 8)]
        it += [f'v_add_f32_dpp v{s}, v{s}, v{s} row_ror:{k} row_mask:0xf bank_mask:0xf' for k in (8, 4, 2, 1)]
        it += [f'v_mov_b32 v{t}, v{s}', f'v_permlane16_swap_b32 v{s}, v{t}', f'v_add_f32 v{s}, v{s}, v{t}']
        it += [f'v_mul_f32 v{s}, s{sNL2E}, v{s}', f'v_exp_f32 v{s}, v{s}', f'v_add_f32 v{s}, 1.0, v{s}', f'v_rcp_f32 v{s}, v{s}']
        it += [I(f'buffer_store_dword v{s}, v{ACC1+18}, {S4(sWS)}, s{sGO} offen sc1', tok='gst')]
        return it

    def wphi_stream(self):
        a0 = ACC1 + 20
        it = []
        for a in range(2):
            for hr in range(2):
                it.append(I(f'ds_read_b64_tr_b16 {V(vWP + 4*a + 2*hr, 2)}, v{a0+a} offset:{hr*128}', need=['wphi']))
        it += [f'v_xor_b32 v{vWP+k}, v{a0+2}, v{vWP+k}' for k in range(8)]
        return it

    def setup_chunks(self):
        if self.typ == 'A':
            st = [dict(n=8, srda=sW1a, srdb=sW1b, va=vQa, vb=vQb, kstep=64*3072, acc=ACC0, nt=4, kind='kv'),
                  dict(n=8, srda=sW2a, srdb=sW2b, va=vFa, vb=vFb, kstep=64*3584, acc=ACC1, nt=4, kind='pair'),
                  dict(n=8, srda=sW3a, srdb=sW3b, va=vFa, vb=vFb, kstep=64*3584, acc=ACC0, nt=2, kind='pair')]
        else:
            st = [dict(n=8, srda=sW1a, srdb=sW1b, va=vFa, vb=vFb, kstep=64*3584, acc=ACC0, nt=4, kind='pair'),
                  dict(n=4, srda=sW2a, srdb=sW2b, va=vQa, vb=vQb, kstep=128*3072, acc=ACC1, nt=4, kind='q'),
                  dict(n=8, srda=sW3a, srdb=sW3b, va=vFa, vb=vFb, kstep=64*3584, acc=ACC0, nt=4, kind='pair')]
        self.stages = st
        self.chunks = [(s, c) for s in st for c in range(s['n'])]
        self.LC = len(self.chunks) - 1
        LC = self.LC
        b = [5, 6, 7, 8, 9] + [(c - 1) % NW for c in range(LC - 3, LC + 1)] + [LC % NW]
        b += b[:8]
        self.bslot = b

    def group_mfmas(self, gc, g, buf):
        st, c = self.chunks[gc]
        mat, a = g >> 1, g & 1
        r = WB + 8*buf
        out = []
        for t in range(st['nt']):
            for ks in range(2):
                if st['kind'] == 'q':
                    d = st['acc'] + (a*4 + t)*4
                    kk = 4*c + 2*mat + ks
                    first = c == 0 and mat == 0 and ks == 0
                else:
                    d = st['acc'] + ((mat*2 + a)*st['nt'] + t)*4
                    kk = 2*c + ks
                    first = c == 0 and ks == 0
                w, x = V(r + 4*ks, 4), A((kk*4 + t)*4)
                if st['kind'] == 'kv' and mat == 1:
                    w, x = x, w
                out.append(f'v_mfma_f32_16x16x32_bf16 {V(d, 4)}, {w}, {x}, {"0" if first else V(d, 4)}')
        return out

    def phase1(self, at_barrier, at_group):
        p = self.p
        nch = len(self.chunks)
        G = [(gc, g) for gc in range(nch) for g in range(4)]
        oth = []
        for n, (gc, g) in enumerate(G):
            st, c = self.chunks[gc]
            at_group(gc, g)
            if g == 2:
                emit_all(p, oth)
                oth = []
                need = ([f'w{gc+1}'] if gc + 1 < nch else []) + ([f'x{gc+1}'] if gc + 1 < 8 else []) + self.bar_need.get(gc, [])
                p.e(I('s_barrier', need=need))
                oth += at_barrier(gc)
            reads = []
            if n + 2 < len(G):
                g2c, g2 = G[n + 2]
                if g2 == 0 and self.chunks[g2c][1] == 0 and g2c in self.xor_at:
                    for ins in self.xor_at[g2c]:
                        p.e(ins)
                reads = self.w_reads(g2c, g2, (n + 2) % 3)
            xr = []
            if gc + 1 < 8 and g >= 2:
                xr = self.x_reads(gc + 1)[4*(g - 2):4*(g - 2) + 4]
            ms = self.group_mfmas(gc, g, n % 3)
            buf = WB + 8*(n % 3)
            for k, m in enumerate(ms):
                o = []
                if reads:
                    o.append(reads.pop(0))
                elif xr:
                    o.append(xr.pop(0))
                lastgap = k == len(ms) - 1
                novalu = gc < 8 and not p.pending()
                room = (3 if novalu else (2 if len(ms) == 4 else 1)) - len(o) - (1 if lastgap and not novalu and len(ms) == 8 else 0)
                while oth and room > 0:
                    x = oth.pop(0)
                    o += x if isinstance(x, list) else [x]
                    room -= len(x) if isinstance(x, list) else 1
                xrd = [('v', buf + i) for i in range(8)] if k == 0 else None
                p.mfma(m, o, extra_rd=xrd, reserve=1 if lastgap else 0)
        emit_all(p, oth)

    def p2_addr_setup(self):
        p = self.p
        a2, fr, o0 = self.vA2, self.vFR, self.vO0
        t0, t1 = vQa, vQb
        it = [f'v_lshrrev_b32 v{t0}, 2, v{vL}',
              f'v_lshlrev_b32 v{t0}, 7, v{t0}',
              f'v_and_b32 v{t1}, 3, v{vL}',
              f'v_lshl_add_u32 v{t0}, v{t1}, 3, v{t0}',
              f'v_add_u32 v{t0}, s{sLDSW}, v{t0}',
              f'v_bfe_u32 v{t1}, v{vL}, 3, 2',
              f'v_lshl_add_u32 v{a2}, v{t1}, 5, v{t0}']
        it += [f'v_xor_b32 v{a2+ct}, {32*ct}, v{a2}' for ct in range(1, 4)]
        it += [f'v_add_u32 v{a2+4+ct}, 0x10000, v{a2+ct}' for ct in range(4)]
        it += [f'v_add_u32 v{a2+8+ct}, 0x20000, v{a2+ct}' for ct in range(4)]
        it += [f'v_lshrrev_b32 v{t0}, 5, v{vL}', f'v_bfe_u32 v{t1}, v{vL}, 3, 2', f'v_lshl_add_u32 v{t0}, v{t0}, 4, v{t1}',
               f'v_and_b32 v{t1}, 0x70, v{vD0}', f'v_lshl_add_u32 v{o0}, v{t0}, 10, v{t1}', f'v_add_u32 v{o0+1}, 7168, v{o0}']
        return it

    def fr_setup(self):
        fr = self.vFR
        it = [[I(f's_lshl_b32 s{sT0}, s{sWAVE}, 10'), I(f'v_add_u32 v{fr}, s{sT0}, v{vHF}')]]
        it += [f'v_xor_b32 v{fr+t}, {1024*t}, v{fr}' for t in range(1, 4)]
        return it

    def w2_reads(self, ch, ct, buf):
        r = WB + 8*buf
        out = []
        for ks in range(2):
            i = 2*ch + ks
            b = self.bslot[i]
            rng, off = divmod(b*BS, 65536)
            for h in range(2):
                out.append(I(f'ds_read_b64_tr_b16 {V(r + 4*ks + 2*h, 2)}, v{self.vA2 + 4*rng + ct} offset:{off + h*2048}', need=[f'd{i}']))
        return out

    def phase2(self, before_chunk):
        p = self.p
        G = [(ch, ct) for ch in range(9) for ct in range(4)]
        for n in range(2):
            for r in self.w2_reads(G[n][0], G[n][1], n % 3):
                p.e(r)
        oth = []
        for n, (ch, ct) in enumerate(G):
            if ct == 0:
                emit_all(p, oth)
                oth = before_chunk(ch) or []
            if ch == 7:
                p.flush(f'scale{ct}')
            reads = self.w2_reads(G[n+2][0], G[n+2][1], (n + 2) % 3) if n + 2 < len(G) else []
            buf = WB + 8*(n % 3)
            k = 0
            for t in range(4):
                for ks in range(2):
                    i = 2*ch + ks
                    d = ACC1 + (ct*4 + t)*4
                    first = ch == 0 and ks == 0
                    o = []
                    if reads:
                        o.append(reads.pop(0))
                    room = 2 - len(o)
                    while oth and room > 0:
                        x = oth.pop(0)
                        o += x if isinstance(x, list) else [x]
                        room -= len(x) if isinstance(x, list) else 1
                    xrd = [('v', buf + x) for x in range(8)] if k == 0 else None
                    p.mfma(f'v_mfma_f32_16x16x32_bf16 {V(d, 4)}, {V(buf + 4*ks, 4)}, {A(((i % 16)*4 + t)*4)}, {"0" if first else V(d, 4)}',
                           o, extra_rd=xrd, reserve=1 if k == 7 else 0)
                    k += 1
            if ch == 6:
                p.add_stream(f'scale{ct}', [f'v_mul_f32 v{ACC1 + (ct*4 + t)*4 + i}, v{vG0+t}, v{ACC1 + (ct*4 + t)*4 + i}'
                                            for t in range(4) for i in range(4)])
            if ct == 3:
                for i in (2*ch + 10, 2*ch + 11):
                    if i < 18:
                        oth += self.dma_w2(i)
        emit_all(p, oth)
        free = [b for b in range(10)][:3]
        ex = self.vA2
        p.e(f'v_lshlrev_b32 v{ex}, 4, v{vL}')
        p.e(f'v_add_u32 v{ex}, s{sLDSW}, v{ex}')
        for s in range(1, 4):
            p.e(f'v_xor_b32 v{ex+s}, {4096*s}, v{ex}')
        o = ex + 4
        p.e(f'v_and_b32 v{o}, 15, v{vL}')
        p.e(f'v_lshlrev_b32 v{o}, 10, v{o}')
        p.e(f'v_bfe_u32 v{o+1}, v{vL}, 4, 1')
        p.e(f'v_lshl_add_u32 v{o}, v{o+1}, 5, v{o}')
        p.e(f'v_lshrrev_b32 v{o+1}, 5, v{vL}')
        p.e(f'v_lshl_add_u32 v{o}, v{o+1}, 4, v{o}')
        p.e(f's_lshl_b32 s{sT0}, s{sWAVE}, 14')
        for ct in range(4):
            for s in range(1, 4):
                p.e(I(f'ds_write_b128 v{ex}, {V(ACC1 + (ct*4 + s)*4, 4)} offset:{free[s-1]*BS + ct*1024}', tok='fin'))
        p.e(I('s_barrier', need=['fin']))
        for ct in range(4):
            for s in range(1, 4):
                p.e(f'ds_read_b128 {V(ACC0 + (ct*4 + s)*4, 4)}, v{ex+s} offset:{free[s-1]*BS + ct*1024}')
        for ct in range(4):
            d = ACC1 + ct*16
            for s in range(1, 4):
                for i in (0, 2):
                    p.e(f'v_pk_add_f32 {V(d+i, 2)}, {V(d+i, 2)}, {V(ACC0 + (ct*4 + s)*4 + i, 2)}')
            P = PHI + (ct >> 1)*4 + (ct & 1)*2
            p.e(f'v_cvt_pk_bf16_f32 v{P}, v{d}, v{d+1}')
            p.e(f'v_cvt_pk_bf16_f32 v{P+1}, v{d+2}, v{d+3}')
            if ct & 1:
                b = PHI + (ct >> 1)*4
                p.e(f'v_permlane16_swap_b32 v{b}, v{b+2}')
                p.e(f'v_permlane16_swap_b32 v{b+1}, v{b+3}')
                p.e(f'buffer_store_dwordx4 {V(b, 4)}, v{o}, {S4(sOUT)}, s{sT0} offen offset:{(ct >> 1)*64}')
        self.stamp()
        p.e('s_endpgm')

    def g_loads(self):
        t0 = vQa
        it = [f'v_and_b32 v{t0}, 15, v{vL}', f'v_lshlrev_b32 v{t0}, 2, v{t0}',
              [I(f's_lshl_b32 s{sT0}, s{sWAVE}, 6'), I(f'v_add_u32 v{t0}, s{sT0}, v{t0}')],
              [I(f's_lshl_b32 s{sT0}, s{sT2}, 8'), I(f's_add_u32 s{sT0}, s{sT0}, {WS_G}')]]
        flat = []
        for x in it:
            flat += x if isinstance(x, list) else [I(x)]
        for t in range(4):
            flat.append(I(f'v_xor_b32 v{vQb}, {64*t}, v{t0}'))
            flat.append(I(f'buffer_load_dword v{vG0+t}, v{vQb}, {S4(sWS)}, s{sT0} offen sc1'))
        return flat

    def prologue(self):
        p = self.p
        A_ = self.typ == 'A'
        t0, t1, t2, t3 = ACC0, ACC0 + 1, ACC0 + 2, ACC0 + 3
        if A_:
            p.e(f's_lshl_b32 s{sT0}, s{sJ}, 7')
            p.e(f's_add_u32 s{sT1}, s{sT0}, 1024')
            srd(p, sW1a, 6, 7, f's{sT1}', 512*3072)
            srd(p, sW1b, 6, 7, f's{sT0}', 512*3072)
            p.e(f's_sub_u32 s{sW1a+2}, s{sW1a+2}, s{sT1}')
            p.e(f's_sub_u32 s{sW1b+2}, s{sW1b+2}, s{sT0}')
        else:
            p.e(f's_mul_i32 s{sT0}, s{sJ}, 448')
            p.e(f's_mul_i32 s{sT1}, s{sJODD}, 192')
            p.e(f's_add_u32 s{sT0}, s{sT0}, s{sT1}')
            self.pair_srd(sW1a, sW1b, sT0)
        p.e(f'v_mov_b32 v{t0}, 0')
        p.e(f'v_mov_b32 v{t0+1}, 0')
        p.e(f'v_mov_b32 v{t0+2}, 0')
        p.e(f'v_mov_b32 v{t0+3}, 0')
        tt = ACC0 + 4
        p.e(f's_or_b32 s{sT1}, s{sC}, s{sWAVE}')
        p.e(f's_cmp_eq_u32 s{sT1}, 0')
        p.e(f's_cselect_b32 s{sT1}, 16, 0')
        p.e(f'v_lshlrev_b32 v{tt}, 7, v{vL}')
        p.e(f'v_mov_b32 v{tt+1}, {OOB}')
        p.e(f'v_cmp_gt_u32 vcc, s{sT1}, v{vL}')
        p.e(f'v_cndmask_b32 v{tt}, v{tt+1}, v{tt}, vcc')
        p.e(f's_lshl_b32 s{sOFF2}, s{sR}, 11')
        p.e(f's_add_u32 s{sOFF2}, s{sOFF2}, {WS_FL}')
        p.e(I(f'buffer_store_dwordx4 {V(t0, 4)}, v{tt}, {S4(sWS)}, s{sOFF2} offen sc1', tok='clr0'))
        for c in range(4):
            for i in self.dma_x(c) + self.dma_w(c):
                p.e(i)
        for i in self.dma_w(4):
            p.e(i)
        p.e(f's_min_u32 s{sT1}, s{sT1}, 1')
        p.e(f's_lshl_b32 s{sT0}, s{sR}, 2')
        p.e(f'v_mov_b32 v{ACC1+24}, s{sT0}')
        p.e(f'v_cmp_gt_u32 vcc, s{sT1}, v{vL}')
        p.e(f'v_cndmask_b32 v{ACC1+24}, v{tt+1}, v{ACC1+24}, vcc')
        if OPT['codepf']:
            p.e(f's_getpc_b64 s[{sT0}:{sT0+1}]')
            p.e(f's_lshr_b32 s{sOFF2}, s2, 3')
            p.e(f's_and_b32 s{sOFF2}, s{sOFF2}, 3')
            p.e(f's_lshl_b32 s{sOFF2}, s{sOFF2}, 2')
            p.e(f's_add_u32 s{sOFF2}, s{sOFF2}, s{sWAVE}')
            p.e(f's_lshl_b32 s{sOFF2}, s{sOFF2}, 11')
            p.e(f'v_and_b32 v{t0}, 15, v{vL}')
            p.e(f'v_lshlrev_b32 v{t0}, 7, v{t0}')
            p.e(f'v_add_u32 v{t0}, s{sOFF2}, v{t0}')
            p.e(f'v_min_u32 v{t0}, L_end{self.typ}-L_pf{self.typ}-64, v{t0}')
            p.e(f'L_pf{self.typ}:')
            p.e(f'global_load_dword v{ACC1+25}, v{t0}, s[{sT0}:{sT0+1}]')
        p.e(f's_lshl_b32 s{sT0}, s{sN2}, 7')
        srd(p, sWDa, 16, 17, f's{sT0}', 1792*1024)
        srd(p, sWOa, 10, 11, f's{sT0}', 512*1024)
        p.e(f's_sub_u32 s{sWDa+2}, s{sWDa+2}, s{sT0}')
        p.e(f's_sub_u32 s{sWOa+2}, s{sWOa+2}, s{sT0}')
        srd(p, sWDb, sWDa, sWDa + 1, 16*1024 - 2048, 0)
        srd(p, sWOb, sWOa, sWOa + 1, 4*1024 - 2048, 0)
        p.e(f's_sub_u32 s{sWDb+2}, s{sWDa+2}, {16*1024 - 2048}')
        p.e(f's_sub_u32 s{sWOb+2}, s{sWOa+2}, {4*1024 - 2048}')
        p.e(f's_lshl_b32 s{sT1}, s{sT2}, 16')
        p.e(f's_add_u32 s{sT0}, s{sT0}, s{sT1}')
        srd(p, sOUT, 20, 21, f's{sT0}', 2048*1024)
        p.e(f's_sub_u32 s{sOUT+2}, s{sOUT+2}, s{sT0}')
        if A_:
            p.e(f's_mul_i32 s{sT0}, s{sJ}, 448')
            p.e(f's_mul_i32 s{sT1}, s{sJODD}, 192')
            p.e(f's_sub_u32 s{sT0}, s{sT0}, s{sT1}')
            p.e(f's_add_u32 s{sT0}, s{sT0}, 256')
            self.pair_srd(sW2a, sW2b, sT0)
            p.e(f's_lshr_b32 s{sHF2}, s{sT0}, 6')
            p.e(f's_add_u32 s{sHF2}, s{sHF2}, s{sCH}')
            p.e(f's_mul_i32 s{sT0}, s{sJ}, 448')
            p.e(f's_mul_i32 s{sT1}, s{sJODD}, 448')
            p.e(f's_sub_u32 s{sT0}, s{sT0}, s{sT1}')
            p.e(f's_add_u32 s{sT0}, s{sT0}, 384')
            self.pair_srd(sW3a, sW3b, sT0)
            p.e(f's_lshr_b32 s{sHF3}, s{sT0}, 6')
            p.e(f's_add_u32 s{sHF3}, s{sHF3}, s{sJODD}')
            p.e(f's_xor_b32 s{sXOR1}, s{sTG}, 1')
            p.e(f's_lshl_b32 s{sXOR1}, s{sXOR1}, 5')
            p.e(f's_xor_b32 s{sXOR2}, s{sCH}, s{sJODD}')
            p.e(f's_lshl_b32 s{sXOR2}, s{sXOR2}, 6')
            hfs = [sHF2, sHF3]
        else:
            p.e(f's_lshl_b32 s{sT0}, s{sJ}, 7')
            srd(p, sW2a, 6, 7, f's{sT0}', 512*3072)
            p.e(f's_sub_u32 s{sW2a+2}, s{sW2a+2}, s{sT0}')
            p.e(f's_add_u32 s{sT0}, s{sT0}, {64*3072 - 2048}')
            srd(p, sW2b, 6, 7, f's{sT0}', 512*3072)
            p.e(f's_sub_u32 s{sW2b+2}, s{sW2b+2}, s{sT0}')
            p.e(f's_mul_i32 s{sT0}, s{sJ}, 448')
            p.e(f's_mul_i32 s{sT1}, s{sJODD}, 192')
            p.e(f's_add_u32 s{sT0}, s{sT0}, s{sT1}')
            p.e(f's_lshr_b32 s{sHF1}, s{sT0}, 6')
            p.e(f's_add_u32 s{sHF1}, s{sHF1}, s{sCH}')
            p.e(f's_add_u32 s{sHF3}, s{sHF1}, 2')
            p.e(f's_add_u32 s{sT0}, s{sT0}, 128')
            self.pair_srd(sW3a, sW3b, sT0)
            p.e(f's_lshl_b32 s{sHFO}, s{sJ}, 1')
            p.e(f's_add_u32 s{sHFO}, s{sHFO}, s{sCH}')
            p.e(f's_add_u32 s{sHFO}, s{sHFO}, 56')
            hfs = [sHF1, sHF3, sHFO]
        p.e(f's_lshl_b32 s{sT0}, s{sJ}, 11')
        p.e(f's_lshl_b32 s{sT1}, s{sCH}, 10')
        p.e(f's_add_u32 s{sOFF}, s{sT0}, s{sT1}')
        p.e(f's_add_u32 m0, s{sLDSW}, {SCR}')
        p.e(I(f'buffer_load_dwordx4 v{vHF}, {S4(sPHI)}, s{sOFF} offen lds', tok='wphi'))
        p.e(f'v_and_b32 v{t1+5}, 31, v{vL}')
        p.e(f'v_lshlrev_b32 v{t1+5}, 5, v{t1+5}')
        p.e(f'v_lshrrev_b32 v{t2+5}, 5, v{vL}')
        p.e(f'v_lshl_add_u32 v{t3+5}, v{t2+5}, 10, v{t1+5}')
        p.e(f's_lshl_b32 s{sT0}, s{sC}, 2')
        p.e(f's_add_u32 s{sT0}, s{sT0}, s{sWAVE}')
        p.e(f's_lshl_b32 s{sOFF2}, s{sT0}, 11')
        p.e(f'buffer_load_dwordx4 {V(ACC1, 4)}, v{t3+5}, {S4(sX)}, s{sOFF2} offen')
        p.e(f'buffer_load_dwordx4 {V(ACC1+4, 4)}, v{t3+5}, {S4(sX)}, s{sOFF2} offen offset:16')
        p.e(f'global_load_dwordx4 {V(ACC1+8, 4)}, v{t1+5}, s[{sGW}:{sGW+1}]')
        p.e(f'global_load_dwordx4 {V(ACC1+12, 4)}, v{t1+5}, s[{sGW}:{sGW+1}] offset:16')
        p.e(f's_lshl_b32 s{sT0}, s{sT0}, 3')
        p.e(f's_lshl_b32 s{sT1}, s{sR}, 9')
        p.e(f's_add_u32 s{sGO}, s{sT0}, s{sT1}')
        p.e(f's_add_u32 s{sGO}, s{sGO}, {WS_G}')
        p.e(f'v_lshlrev_b32 v{t2+5}, 2, v{t2+5}')
        p.e(f'v_cmp_eq_u32 vcc, 0, v{t1+5}')
        p.e(f'v_cndmask_b32 v{ACC1+18}, v{tt+1}, v{t2+5}, vcc')
        if A_:
            n_, q_ = ACC0 + 10, ACC0 + 11
            p.e(f'v_and_b32 v{n_}, 15, v{vL}')
            p.e(f'v_lshrrev_b32 v{q_}, 4, v{vL}')
            p.e(f'v_lshlrev_b32 v{q_}, 4, v{q_}')
            p.e(f'v_and_b32 v{vM1}, 7, v{vL}')
            p.e(f'v_lshl_add_u32 v{vM1}, v{vM1}, 6, v{q_}')
            p.e(f'v_bfe_u32 v{vM1z}, v{vL}, 3, 1')
            p.e(f'v_mul_u32_u24 v{vM1z}, 10240, v{vM1z}')
            p.e(f'v_add_u32 v{vM1}, v{vM1}, v{vM1z}')
            p.e(f'v_add_u32 v{q_}, 512, v{q_}')
            p.e(f'v_cmp_eq_u32 vcc, 0, v{n_}')
            p.e(f'v_cndmask_b32 v{vM1z}, v{tt+1}, v{q_}, vcc')
            p.e(f's_mul_i32 s{sT0}, s{sJ}, 163840')
            p.e(f's_add_u32 s{sT0}, s{sT0}, {WS_M1}')
            p.e(f's_mul_i32 s{sT1}, s{sR}, 10240')
            p.e(f's_add_u32 s{sRED}, s{sT0}, s{sT1}')
            p.e(f's_add_u32 s{sRED+1}, s{sRED}, {6*640}')
            p.e(f's_add_u32 s{sRED+2}, s{sRED}, {12*640}')
            p.e(f's_mul_i32 s{sT1}, s{sR}, 640')
            p.e(f's_add_u32 s{sT0}, s{sT0}, s{sT1}')
            p.e(f's_lshl_b32 s{sT1}, s{sCH}, 1')
            p.e(f's_add_u32 s{sT1}, s{sT1}, s{sTG}')
            p.e(f's_mul_i32 s{sT1}, s{sT1}, 40960')
            p.e(f's_add_u32 s{sM1}, s{sT0}, s{sT1}')
            p.e(f's_add_u32 s{sM1b}, s{sM1}, 20480')
            p.e(f's_bitcmp1_b32 s{sR}, 0')
            p.e(f's_cselect_b32 s{sT0}, 32, 36')
            p.e(f's_cmp_eq_u32 s{sWAVE}, 0')
            p.e(f's_cselect_b32 s{sT0}, s{sT0}, 0')
            p.e(f'v_cmp_gt_u32 vcc, s{sT0}, v{vL}')
            p.e(f'v_cndmask_b32 v{vRED}, v{tt+1}, v{vHF}, vcc')
            p.e(f's_and_b32 s{sT1}, s{sR}, 1')
            p.e(f's_lshl_b32 s{sT1}, s{sT1}, 8')
            p.e(f'v_lshlrev_b32 v{n_}, 3, v{vL}')
            p.e(f'v_lshrrev_b32 v{q_}, 5, v{vL}')
            p.e(f'v_lshl_add_u32 v{n_}, v{q_}, 8, v{n_}')
            p.e(f'v_add_u32 v{n_}, s{sT1}, v{n_}')
            p.e(f'v_cndmask_b32 v{vM2}, v{tt+1}, v{n_}, vcc')
            p.e(f's_mul_i32 s{sT0}, s{sJ}, 4352')
            p.e(f's_lshr_b32 s{sT1}, s{sR}, 1')
            p.e(f's_mul_i32 s{sT1}, s{sT1}, 544')
            p.e(f's_add_u32 s{sT0}, s{sT0}, s{sT1}')
            p.e(f's_add_u32 s{sM2}, s{sT0}, {WS_M2}')
            m = ACC0 + 12
            for i in range(4):
                p.e(f'v_mov_b32 v{m+i}, -1')
            for so in (sM1, sM1b):
                p.e(I(f'buffer_store_dwordx4 {V(m, 4)}, v{vM1}, {S4(sWS)}, s{so} offen sc1', tok='clr'))
                p.e(I(f'buffer_store_dwordx4 {V(m, 4)}, v{vM1z}, {S4(sWS)}, s{so} offen sc1', tok='clr'))
            p.e(I(f'buffer_store_dwordx2 {V(m, 2)}, v{vM2}, {S4(sWS)}, s{sM2} offen sc1', tok='clr'))
        p.e(f's_lshl_b32 s{sT0}, s{sR}, 1')
        p.e(f's_add_u32 s{sT0}, s{sT0}, s{sTG}')
        p.e(f's_mul_i32 s{sT0}, s{sT0}, 72')
        for h in hfs:
            p.e(f's_add_u32 s{h}, s{h}, s{sT0}')
            p.e(f's_lshl_b32 s{h}, s{h}, 12')
        p.e(f's_mul_i32 s{sT0}, s{sT2}, 72')
        p.e(f's_mul_i32 s{sT1}, s{sWAVE}, 14')
        p.e(f's_lshl_b32 s{sWDo}, s{sT1}, 15')
        p.e(f's_add_u32 s{sT1}, s{sT1}, s{sT0}')
        p.e(f's_lshl_b32 s{sP2}, s{sT1}, 12')
        p.e(f's_lshl_b32 s{sT1}, s{sWAVE}, 2')
        p.e(f's_lshl_b32 s{sWOo}, s{sT1}, 15')
        p.e(f's_add_u32 s{sT1}, s{sT1}, s{sT0}')
        p.e(f's_add_u32 s{sT1}, s{sT1}, 56')
        p.e(f's_lshl_b32 s{sP2o}, s{sT1}, 12')
        p.e(f's_lshl_b32 s{sT0}, s{sR}, 4')
        p.e(f's_add_u32 s{sT0}, s{sT0}, s{sC}')
        p.e(f's_lshl_b32 s{sT0}, s{sT0}, 5')
        p.e(f's_add_u32 s{sT0}, s{sT0}, s{sWAVE}')
        p.e(f's_lshl_b32 s{sT0}, s{sT0}, 2')
        p.e(f's_add_u32 s{sFLG}, s{sT0}, {WS_FL}')
        p.e(f'v_cmp_eq_u32 vcc, 0, v{vL}')
        p.e(f'v_cndmask_b32 v{vFL}, v{tt+1}, v{vL}, vcc')
        u0, u1 = ACC0 + 10, ACC0 + 11
        p.e(f's_lshr_b32 s{sT0}, s{sT2}, 1')
        p.e(f's_lshl_b32 s{sT0}, s{sT0}, 11')
        p.e(f's_add_u32 s{sT0}, s{sT0}, {WS_FL}')
        p.e(f's_and_b32 s{sT1}, s{sT2}, 1')
        p.e(f'v_bfe_u32 v{u0}, v{vL}, 2, 3')
        p.e(f'v_and_b32 v{u1}, 3, v{vL}')
        p.e(f'v_lshlrev_b32 v{u1}, 2, v{u1}')
        p.e(f'v_lshl_add_u32 v{u0}, v{u0}, 7, v{u1}')
        p.e(f's_lshl_b32 s{sOFF2}, s{sT1}, 10')
        p.e(f's_add_u32 s{sOFF2}, s{sOFF2}, s{sT0}')
        p.e(f'v_add_u32 v{vPG}, s{sOFF2}, v{u0}')
        p.e(f's_lshl_b32 s{sT1}, s{sT1}, 3')
        p.e(f's_add_u32 s{sT0}, s{sT0}, s{sT1}')
        p.e(f's_lshl_b32 s{sT1}, s{sWAVE}, 8')
        p.e(f's_add_u32 s{sT0}, s{sT0}, s{sT1}')
        p.e(f'v_and_b32 v{vPA}, 1, v{vL}')
        p.e(f'v_lshlrev_b32 v{vPA}, 7, v{vPA}')
        p.e(f'v_bfe_u32 v{u1}, v{vL}, 1, 1')
        p.e(f'v_lshl_add_u32 v{vPA}, v{u1}, 2, v{vPA}')
        p.e(f'v_add_u32 v{vPA}, s{sT0}, v{vPA}')
        if A_:
            p.e(f'v_lshrrev_b32 v{u0}, 2, v{vL}')
            p.e(f'v_and_b32 v{u1}, 3, v{vL}')
            p.e(f'v_lshlrev_b32 v{u1}, 2, v{u1}')
            p.e(f'v_lshl_add_u32 v{u0}, v{u0}, 11, v{u1}')
            p.e(f's_lshl_b32 s{sT0}, s{sC}, 7')
            p.e(f's_add_u32 s{sT0}, s{sT0}, {WS_FL}')
            p.e(f'v_add_u32 v{vPX}, s{sT0}, v{u0}')
        else:
            p.e(f's_lshl_b32 s{sT0}, s{sR}, 1')
            p.e(f's_add_u32 s{sT0}, s{sT0}, s{sTG}')
            p.e(f's_lshl_b32 s{sT0}, s{sT0}, 10')
            p.e(f's_add_u32 s{sT0}, s{sT0}, {WS_FL}')
            p.e(f'v_add_u32 v{u0}, s{sT0}, v{u0}')
            p.e(f'v_bfe_u32 v{u1}, v{vL}, 1, 4')
            p.e(f'v_lshlrev_b32 v{u1}, 11, v{u1}')
            p.e(f's_lshl_b32 s{sT0}, s{sJ}, 7')
            p.e(f's_add_u32 s{sT0}, s{sT0}, {WS_FL}')
            p.e(f'v_add_u32 v{u1}, s{sT0}, v{u1}')
            p.e(f'v_cmp_gt_u32 vcc, 32, v{vL}')
            p.e(f'v_cndmask_b32 v{vPX}, v{u1}, v{u0}, vcc')
        p.e(f'v_lshrrev_b32 v{u0}, 5, v{vL}')
        p.e(f'v_lshlrev_b32 v{u0}, 12, v{u0}')
        p.e(f'v_bfe_u32 v{u1}, v{vL}, 4, 1')
        p.e(f'v_lshl_add_u32 v{u0}, v{u1}, 10, v{u0}')
        p.e(f'v_bfe_u32 v{u1}, v{vL}, 2, 2')
        p.e(f'v_lshl_add_u32 v{u0}, v{u1}, 7, v{u0}')
        p.e(f'v_and_b32 v{u1}, 3, v{vL}')
        p.e(f'v_lshl_add_u32 v{u0}, v{u1}, 3, v{u0}')
        p.e(f'v_bfe_u32 v{u1}, v{vL}, 3, 2')
        p.e(f'v_lshl_add_u32 v{u0}, v{u1}, 5, v{u0}')
        p.e(f's_lshl_b32 s{sT0}, s{sCH}, 6')
        if A_:
            p.e(f's_or_b32 s{sT0}, s{sT0}, s{sXOR1}')
        p.e(f'v_xor_b32 v{vAW}, s{sT0}, v{u0}')
        p.e(f'v_xor_b32 v{vAW+1}, 32, v{vAW}')
        p.e(f'v_add_u32 v{vAW+2}, 0x10000, v{vAW}')
        p.e(f'v_add_u32 v{vAW+3}, 0x10000, v{vAW+1}')
        p.e(f'v_and_b32 v{u0}, 15, v{vL}')
        p.e(f'v_lshrrev_b32 v{u1}, 4, v{vL}')
        p.e(f'v_bfe_u32 v{PHI}, v{vL}, 1, 3')
        p.e(f'v_xor_b32 v{u1}, v{u1}, v{PHI}')
        p.e(f'v_lshlrev_b32 v{u1}, 4, v{u1}')
        p.e(f'v_lshl_add_u32 v{u0}, v{u0}, 7, v{u1}')
        p.e(f's_lshl_b32 s{sT0}, s{sTG}, 13')
        p.e(f's_add_u32 s{sT0}, s{sT0}, {XR0}')
        if A_:
            p.e(f's_lshl_b32 s{sT1}, s{sCH}, 12')
            p.e(f's_add_u32 s{sT0}, s{sT0}, s{sT1}')
        p.e(f'v_add_u32 v{PHI}, s{sT0}, v{u0}')
        p.e(f'v_xor_b32 v{PHI+1}, 4096, v{PHI}')
        p.e(f'v_xor_b32 v{PHI+2}, 64, v{PHI}')
        p.e(f'v_xor_b32 v{PHI+3}, 64, v{PHI+1}')
        a0 = ACC1 + 20
        p.e(f'v_lshrrev_b32 v{u0}, 5, v{vL}')
        p.e(f'v_lshlrev_b32 v{u0}, 8, v{u0}')
        p.e(f'v_bfe_u32 v{u1}, v{vL}, 2, 2')
        p.e(f'v_lshl_add_u32 v{u0}, v{u1}, 5, v{u0}')
        p.e(f'v_bfe_u32 v{u1}, v{vL}, 4, 1')
        p.e(f'v_lshl_add_u32 v{u0}, v{u1}, 4, v{u0}')
        p.e(f'v_bfe_u32 v{u1}, v{vL}, 1, 1')
        p.e(f'v_lshl_add_u32 v{u0}, v{u1}, 3, v{u0}')
        p.e(f's_add_u32 s{sT0}, s{sLDSW}, {SCR}')
        p.e(f'v_add_u32 v{a0}, s{sT0}, v{u0}')
        if A_:
            p.e(f's_lshl_b32 s{sT1}, s{sXOR1}, 4')
            p.e(f'v_xor_b32 v{a0}, s{sT1}, v{a0}')
        p.e(f'v_xor_b32 v{a0+1}, 512, v{a0}')
        p.e(f'v_bfe_u32 v{u1}, v{vL}, 2, 1')
        p.e(f'v_mul_u32_u24 v{u1}, 0x8000, v{u1}')
        p.e(f'v_lshl_or_b32 v{a0+2}, v{u1}, 16, v{u1}')
        if A_:
            p.e(f'v_lshrrev_b32 v{u0}, 5, v{vL}')
            p.e(f'v_lshlrev_b32 v{u0}, 10, v{u0}')
            p.e(f'v_and_b32 v{u1}, 31, v{vL}')
            p.e(f'v_lshl_add_u32 v{u0}, v{u1}, 5, v{u0}')
            p.e(f'v_add_u32 v{vPW}, s{sT0}, v{u0}')
            p.e(f'v_lshlrev_b32 v{u0}, 3, v{vL}')
            p.e(f'v_add_u32 v{vPR}, s{sT0}, v{u0}')
            for i in range(4):
                p.e(f'v_mov_b32 v{ONES+i}, 0x3f803f80')
        p.e(f'v_and_b32 v{u0}, 7, v{vL}')
        p.e(f'v_bfe_u32 v{u1}, v{vL}, 4, 2')
        p.e(f'v_lshlrev_b32 v{u1}, 1, v{u1}')
        p.e(f'v_xor_b32 v{u0}, v{u0}, v{u1}')
        p.e(f'v_lshlrev_b32 v{u0}, 4, v{u0}')
        p.e(f'v_lshrrev_b32 v{u1}, 3, v{vL}')
        p.e(f'v_lshl_add_u32 v{vD0}, v{u1}, 10, v{u0}')
        p.e(f'v_add_u32 v{vD1}, 7168, v{vD0}')
        self.stamp()
        p.e(I('s_barrier', need=['x0', 'w0']))
        self.stamp()
        p.e(f'v_mov_b32 v{vFV}, 1')
        p.e(I(f'buffer_store_dword v{vFV}, v{ACC1+24}, {S4(sDBG)}, 0 offen sc1', need=['clr0']))
        xr = self.x_reads(0)
        w0, w1 = self.w_reads(0, 0, 0), self.w_reads(0, 1, 1)
        for i in w0 + xr + w1:
            p.e(i)

    def pair_srd(self, a, b, scol):
        p = self.p
        srd(p, a, 12, 13, f's{scol}', 512*3584)
        p.e(f's_sub_u32 s{a+2}, s{a+2}, s{scol}')
        srd(p, b, 14, 15, f's{scol}', 512*3584 + 2048)
        p.e(f's_sub_u32 s{b+2}, s{b+2}, s{scol}')
        p.e(f's_sub_u32 s{b}, s{b}, 2048')
        p.e(f's_subb_u32 s{b+1}, s{b+1}, 0')

    def xor_aw(self, s):
        return [I(f'v_xor_b32 v{vAW+i}, s{s}, v{vAW+i}') for i in range(4)]

    def common_barrier(self, gc):
        p, LC = self.p, self.LC
        it = []
        dbg_ld = f'buffer_load_dword v{vPD}, v{self.vDB}, {S4(sDBG)}, 0 offen sc1'
        if gc == 5:
            it += [I(f'v_and_b32 v{self.vDB}, 15, v{vL}'), I(f'v_lshlrev_b32 v{self.vDB}, 2, v{self.vDB}'), I(dbg_ld)]
        if gc == 8:
            self.poll_check(vPD, 1, dbg_ld)
            it += self.flag(1, ['gst', 'clr', 'clr0'])
        if gc == LC - 3:
            it += [I(self.ldBE()), I(self.ldG2())]
        if gc + 4 < 8:
            it += self.dma_x(gc + 4)
        if gc >= 1 and gc + 4 <= LC:
            it += self.dma_w(gc + 4)
        if 8 <= gc < 12:
            it += self.dma_w2(gc - 8)
        if gc >= LC - 3:
            it += self.dma_w2(5 + gc - (LC - 3))
        return it

    def ldBE(self):
        return f'buffer_load_dword v{vPD}, v{vPA}, {S4(sWS)}, 0 offen offset:1024 sc1'

    def ldAE(self):
        return f'buffer_load_dword v{vPD2}, v{vPA}, {S4(sWS)}, 0 offen sc1'

    def ldG2(self):
        return f'buffer_load_dword v{vPD3}, v{vPG}, {S4(sWS)}, 0 offen sc1'

    def ldX(self):
        return f'buffer_load_dword v{vPD2}, v{vPX}, {S4(sWS)}, 0 offen sc1'

    def prog_A(self):
        p = self.p
        self.setup_chunks()
        LC = self.LC
        self.vDB = vPD3
        self.vEX = vQa
        self.vA2, self.vFR, self.vO0 = LB, LB + 12, LB + 16
        self.bar_need = {15: ['exw']}
        self.xor_at = {8: self.xor_aw(sXOR1), 16: self.xor_aw(sXOR2)}
        self.prologue()

        def at_group(gc, g):
            if gc == 4 and g == 2:
                p.add_stream('g', self.g_stream())
                p.add_stream('wp', self.wphi_stream())
            if gc == 7 and g == 0:
                p.flush()
                p.add_stream('ex', [[I(f's_add_u32 s{sT0}, s{sLDSW}, {SCR}'), I(f'v_add_u32 v{self.vEX}, s{sT0}, v{vHF}')],
                                    f'v_xor_b32 v{self.vEX+1}, 8192, v{self.vEX}'])
            if gc == 8 and g == 0:
                self.stamp()
                p.flush()
                p.add_stream('k', self.k_stream())
            if gc == 15 and g == 2:
                p.flush()
            if gc == 15 and g == 3:
                X = LB
                it = [f'ds_read_b128 {V(X + 4*k, 4)}, v{self.vEX+1} offset:{1024*k}' for k in range(4)]
                it += [f'v_add_f32 v{PHI+16+k}, v{PHI+16+k}, v{X+k}' for k in range(16)]
                D = PHI + 16
                it += [f'buffer_store_dwordx4 {V(D, 4)}, v{vM1}, {S4(sWS)}, s{sM1} offen sc1',
                       f'buffer_store_dwordx4 {V(D+4, 4)}, v{vM1}, {S4(sWS)}, s{sM1b} offen sc1',
                       f'buffer_store_dwordx4 {V(D+8, 4)}, v{vM1z}, {S4(sWS)}, s{sM1} offen sc1',
                       f'buffer_store_dwordx4 {V(D+12, 4)}, v{vM1z}, {S4(sWS)}, s{sM1b} offen sc1']
                p.add_stream('ex', it)
            if gc == 16 and g == 0:
                self.stamp()
                it = self.hf_setup(sHF2)
                for t in range(4):
                    it += self.ffn_epi(ACC1, 4, t, 'hE')
                p.add_stream('e2', it)
            if gc == 18 and g == 0:
                p.flush('ex')
                p.add_stream('ad', self.p2_addr_setup() + self.fr_setup())

        def at_barrier(gc):
            it = []
            if gc == LC - 4:
                it += [I(self.ldX())]
            it += self.common_barrier(gc)
            if gc == 18:
                it += self.dma_w2(4)
            return it

        self.phase1(at_barrier, at_group)
        self.stamp()
        p.flush('ad')
        p.e('s_barrier')
        for i in self.dma_w2(9):
            p.e(i)
        self.poll_check(vPD2, 1, self.ldX())
        R = [PHI + 4*k for k in range(8)] + [ACC0 + 32 + 4*k for k in range(8)]
        rl = [f'buffer_load_dwordx4 {V(R[k], 4)}, v{vRED}, {S4(sWS)}, s{sRED + k//6} offen offset:{(k % 6)*640} sc1' for k in range(16)]
        for x in rl:
            p.e(x)
        self.poll_check(vPD, 2, self.ldBE())
        for i in range(4):
            for x in self.load_frags(i):
                p.e(x)
        p.flush()
        it = self.hf_setup(sHF3)
        for t in range(2):
            it += self.ffn_epi(ACC0, 2, t, 'hL')
        p.add_stream('e3', it)
        p.flush()
        emit_all(p, self.flag(2, ['hE']))
        rs = [f'v_add_f32 v{R[0]+i}, v{R[0]+i}, v{R[k]+i}' for k in range(1, 16) for i in range(4)]
        chk = [f'v_add_f32 v{vM}, v{R[0]}, v{R[0]+1}', f'v_add_f32 v{vS}, v{R[0]+2}, v{R[0]+3}', f'v_cmp_u_f32 vcc, v{vM}, v{vS}']
        for x in rs + chk:
            p.e(x)
        p.e('s_cbranch_vccnz L_slowred')
        p.e('L_okred:')
        p.slow.append('L_slowred:\n    s_mov_b32 s%d, 0\nL_loopred:\n' % sCNT + ''.join('    ' + x + '\n' for x in rl) + '    s_waitcnt vmcnt(0)\n'
                      + ''.join('    ' + x + '\n' for x in rs + chk)
                      + f'    s_nop 1\n    s_cbranch_vccz L_okred\n    s_add_u32 s{sCNT}, s{sCNT}, 1\n    s_cmp_lt_u32 s{sCNT}, 0x4000\n'
                      + '    s_cbranch_scc1 L_loopred\n    s_branch L_okred\n')
        p.e(f'v_cvt_pk_bf16_f32 v{R[1]}, v{R[0]}, v{R[0]+1}')
        p.e(f'v_cvt_pk_bf16_f32 v{R[1]+1}, v{R[0]+2}, v{R[0]+3}')
        p.e(f'buffer_store_dwordx2 {V(R[1], 2)}, v{vM2}, {S4(sWS)}, s{sM2} offen sc1')
        p.e(self.ldAE())
        self.stamp()
        self.phase2(lambda ch: self.p2_events(ch))

    def p2_events(self, ch):
        p = self.p
        A_ = self.typ == 'A'
        it = []
        if ch == 1:
            if A_:
                it += self.flag(3, ['hL'])
        if ch == 2:
            if not A_:
                self.o_block()
            self.poll_check(vPD2, 2, self.ldAE())
            for i in range(4, 8):
                for x in self.load_frags(i):
                    p.e(x)
            p.e(self.ldAE())
            p.e(self.ldBE())
            self.stamp()
        if ch == 3:
            if not A_:
                emit_all(p, self.flag(4, ['hO']))
            self.poll_check(vPD2, 3, self.ldAE())
            for i in range(8, 10):
                it += self.load_frags(i)
        if ch == 4:
            self.poll_check(vPD, 3, self.ldBE())
            for i in range(10, 14):
                it += self.load_frags(i)
            it += [I(self.ldBE())]
        if ch == 5:
            self.poll_check(vPD3, 1, self.ldG2())
            it += self.g_loads()
        if ch == 6:
            self.stamp()
            self.poll_check(vPD, 4, self.ldBE())
            for i in range(14, 18):
                it += self.load_frags(i)
            for t in range(4):
                p.e(f'v_sub_f32 v{vG0+t}, 1.0, v{vG0+t}')
        if ch == 7:
            self.stamp()
        return it

    def o_loads(self):
        K = ACC0
        ld = [f'buffer_load_dwordx4 {V(K + 8*a + 4*s, 4)}, v{vRED}, {S4(sWS)}, s{sM2} offen offset:{a*1088 + 16*s} sc1' for a in range(2) for s in range(2)]
        chk = [f'v_max3_u32 v{vM}, v{K}, v{K+1}, v{K+2}']
        chk += [f'v_max3_u32 v{vM}, v{vM}, v{K+3+2*k}, v{K+4+2*k}' for k in range(6)]
        chk += [f'v_max_u32 v{vM}, v{vM}, v{K+15}', f'v_cmp_eq_u32 vcc, -1, v{vM}']
        return ld, chk

    def o_block(self):
        p = self.p
        K = ACC0
        ld, chk = self.o_loads()
        for x in chk:
            p.e(x)
        p.e('s_cbranch_vccnz L_slowkv')
        p.e('L_okkv:')
        p.slow.append('L_slowkv:\n    s_mov_b32 s%d, 0\nL_loopkv:\n' % sCNT + ''.join('    ' + x + '\n' for x in ld) + '    s_waitcnt vmcnt(0)\n'
                      + ''.join('    ' + x + '\n' for x in chk)
                      + f'    s_nop 1\n    s_cbranch_vccz L_okkv\n    s_add_u32 s{sCNT}, s{sCNT}, 1\n    s_cmp_lt_u32 s{sCNT}, 0x10000\n'
                      + '    s_cbranch_scc1 L_loopkv\n    s_branch L_okkv\n')
        emit_all(p, self.hf_setup(sHFO))
        D = [ACC0 + 16, ACC0 + 32]
        O = ACC0 + 48
        for P in range(2):
            for a in range(2):
                ph = PHI + (P*2 + a)*8
                p.e(f'v_mfma_f32_32x32x16_bf16 {V(D[a], 16)}, {V(K + 8*a, 4)}, {V(ph, 4)}, 0')
                p.e(f'v_mfma_f32_32x32x16_bf16 {V(D[a], 16)}, {V(K + 8*a + 4, 4)}, {V(ph + 4, 4)}, {V(D[a], 16)}')
            for a in range(2):
                d = D[a]
                p.e(f'v_add_f32 v{d+8}, 0x358637bd, v{d+8}')
                p.e(f'v_rcp_f32 v{d+8}, v{d+8}')
                p.e(f'v_mul_f32 v{d+8}, v{d+8}, v{vM1+P}')
                for i in range(8):
                    p.e(f'v_mul_f32 v{d+i}, v{d+i}, v{d+8}')
                for k in range(4):
                    p.e(f'v_cvt_pk_bf16_f32 v{O + 8*P + 4*a + k}, v{d+2*k}, v{d+2*k+1}')
            for k in range(4):
                p.e(f'v_permlane16_swap_b32 v{O + 8*P + k}, v{O + 8*P + 4 + k}')
            so = sHFa if P == 0 else sHFb
            for a in range(2):
                p.e(I(f'buffer_store_dwordx4 {V(O + 8*P + 4*a, 4)}, v{vHF}, {S4(sWS)}, s{so} offen offset:{a*1024} sc1', tok='hO'))

    def prog_B(self):
        p = self.p
        self.setup_chunks()
        LC = self.LC
        self.vDB = vPD3
        self.vA2, self.vFR, self.vO0 = LB, LB + 12, LB + 16
        self.bar_need = {}
        self.xor_at = {}
        self.prologue()

        def at_group(gc, g):
            if gc == 4 and g == 2:
                p.add_stream('g', self.g_stream())
                p.add_stream('wp', self.wphi_stream())
            if gc == 7 and g == 0:
                p.flush()
            if gc == 8 and g == 0:
                self.stamp()
                it = self.hf_setup(sHF1)
                for t in range(4):
                    it += self.ffn_epi(ACC0, 4, t, 'hE')
                p.add_stream('e1', it)
            if gc == 12 and g == 0:
                p.flush()
                self.stamp()
                u0, u1 = vM1, vM1z
                it = [f'v_bfe_u32 v{u0}, v{vL}, 3, 1', f'v_lshlrev_b32 v{u0}, 2, v{u0}', f'v_and_b32 v{u1}, 3, v{vL}', f'v_add_u32 v{u0}, v{u0}, v{u1}',
                      f'v_bfe_u32 v{u1}, v{vL}, 2, 1', f'v_lshl_add_u32 v{u0}, v{u1}, 3, v{u0}',
                      f'v_bfe_u32 v{u1}, v{vL}, 4, 1', f'v_lshlrev_b32 v{u1}, 4, v{u1}', f'v_max_u32 v{u0}, v{u0}, v{u1}',
                      f'v_lshlrev_b32 v{u0}, 5, v{u0}', f'v_lshrrev_b32 v{u1}, 5, v{vL}', f'v_mul_u32_u24 v{u1}, 544, v{u1}', f'v_add_u32 v{vRED}, v{u0}, v{u1}',
                      [I(f's_lshl_b32 s{sM2}, s{sJ}, 1'), I(f's_add_u32 s{sM2}, s{sM2}, s{sCH}')],
                      [I(f's_mul_i32 s{sM2}, s{sM2}, 2176'), I(f's_add_u32 s{sM2}, s{sM2}, {WS_M2}')],
                      f'v_and_b32 v{vM2}, 31, v{vL}', f'v_lshlrev_b32 v{vM2}, 2, v{vM2}',
                      [I(f's_lshl_b32 s{sGO}, s{sR}, 1'), I(f's_add_u32 s{sGO}, s{sGO}, s{sTG}')],
                      [I(f's_lshl_b32 s{sGO}, s{sGO}, 8'), I(f's_add_u32 s{sGO}, s{sGO}, {WS_G}')]]
                p.add_stream('q', self.q_stream())
                p.add_stream('ad0', it)
            if gc == LC and g == 0:
                p.flush('q')
                p.add_stream('ad', self.p2_addr_setup() + self.fr_setup())

        def at_barrier(gc):
            it = []
            if gc == LC - 4:
                it += [I(self.ldX())]
            if gc == 14:
                it += self.flag(2, ['hE'])
            it += self.common_barrier(gc)
            if gc == 12:
                it += self.dma_w2(4)
            return it

        self.phase1(at_barrier, at_group)
        self.stamp()
        p.flush()
        p.e('s_barrier')
        for i in self.dma_w2(9):
            p.e(i)
        self.poll_check(vPD, 2, self.ldBE())
        for i in range(4):
            for x in self.load_frags(i):
                p.e(x)
        it = self.hf_setup(sHF3)
        for t in range(4):
            it += self.ffn_epi(ACC0, 4, t, 'hL')
        p.add_stream('e3', it)
        p.flush()
        self.poll_check(vPD2, 1, self.ldX())
        for x in self.o_loads()[0]:
            p.e(x)
        for P in range(2):
            p.e(f'buffer_load_dword v{vM1+P}, v{vM2}, {S4(sWS)}, s{sGO} offen offset:{128*P} sc1')
        p.e(self.ldAE())
        self.stamp()

        def ev(ch):
            it = []
            if ch == 1:
                it += self.flag(3, ['hL'])
            return it + self.p2_events(ch)
        self.phase2(ev)


def common_prologue():
    p = Prog()
    p.lines(f'''
    s_cmp_ge_u32 s2, 256
    s_cbranch_scc1 L_exit
    s_load_dwordx8 s[4:11], s[0:1], 0
    s_load_dwordx8 s[12:19], s[0:1], 40
    s_load_dwordx4 s[20:23], s[0:1], 72
    s_load_dwordx2 s[24:25], s[0:1], 88
    v_lshrrev_b32 v1, 6, v0
    v_and_b32 v{vL}, 63, v0
    v_readfirstlane_b32 s{sWAVE}, v1
    s_and_b32 s{sT0}, s2, 7
    s_lshr_b32 s{sT1}, s2, 3
    s_and_b32 s{sN2}, s{sT1}, 7
    s_lshr_b32 s{sOFF}, s{sT1}, 3
    s_lshl_b32 s{sT2}, s{sT0}, 2
    s_add_u32 s{sT2}, s{sT2}, s{sOFF}
    s_and_b32 s{sR}, s{sT0}, 1
    s_lshl_b32 s{sR}, s{sR}, 3
    s_add_u32 s{sR}, s{sR}, s{sN2}
    s_and_b32 s{sJODD}, s{sOFF}, 1
    s_and_b32 s{sJ}, s{sT0}, 6
    s_add_u32 s{sJ}, s{sJ}, s{sJODD}
    s_lshr_b32 s{sOFF}, s{sOFF}, 1
    s_lshl_b32 s{sC}, s{sOFF}, 3
    s_add_u32 s{sC}, s{sC}, s{sJ}
    s_lshr_b32 s{sTG}, s{sWAVE}, 1
    s_and_b32 s{sCH}, s{sWAVE}, 1
    s_lshl_b32 s{sLDSW}, s{sWAVE}, 12
    s_mov_b32 s{sL2E}, 0x3fb8aa3b
    s_mov_b32 s{sNL2E}, 0xbfb8aa3b
    v_lshlrev_b32 v{vHF}, 4, v{vL}
    ''')
    rr, pp, u, t = ACC0, ACC0 + 1, ACC0 + 2, ACC0 + 3
    p.lines(f'''
    v_lshrrev_b32 v{rr}, 3, v{vL}
    v_and_b32 v{pp}, 7, v{vL}
    v_lshrrev_b32 v{u}, 4, v{vL}
    v_xor_b32 v{u}, v{u}, v{pp}
    v_lshlrev_b32 v{u}, 4, v{u}
    v_lshl_add_u32 v{u}, v{rr}, 10, v{u}
    s_lshl_b32 s{sT0}, s{sWAVE}, 15
    v_add_u32 v{LB}, s{sT0}, v{u}
    v_xor_b32 v{LB+1}, 64, v{LB}
    v_add_u32 v{LB+1}, 7168, v{LB+1}
    v_add_u32 v{LB+2}, {2*7168}, v{LB}
    v_add_u32 v{LB+3}, {2*7168}, v{LB+1}
    v_bfe_u32 v{u}, v{vL}, 4, 1
    v_lshlrev_b32 v{u}, 1, v{u}
    v_xor_b32 v{u}, v{u}, v{pp}
    v_lshlrev_b32 v{u}, 4, v{u}
    s_lshl_b32 s{sT0}, s{sWAVE}, 4
    v_add_u32 v{t}, s{sT0}, v{rr}
    v_mul_u32_u24 v{vQa}, 3072, v{t}
    v_mul_u32_u24 v{vFa}, 3584, v{t}
    v_add_u32 v{vQa}, v{vQa}, v{u}
    v_add_u32 v{vFa}, v{vFa}, v{u}
    v_xor_b32 v{vQb}, 64, v{vQa}
    v_xor_b32 v{vFb}, 64, v{vFa}
    v_add_u32 v{vQb}, {8*3072 - 1024}, v{vQb}
    v_add_u32 v{vFb}, {8*3584 - 1024}, v{vFb}
    s_lshl_b32 s{sT0}, s{sR}, 17
    s_waitcnt lgkmcnt(0)
    ''')
    srd(p, sX, 4, 5, f's{sT0}', 131072)
    srd(p, sWS, 24, 25, 0, WS_SIZE)
    srd(p, sDBG, 22, 23, 0, 256)
    srd(p, sPHI, 8, 9, 0, 16384)
    p.e(f's_mov_b32 s{sGW}, s18')
    p.e(f's_mov_b32 s{sGW+1}, s19')
    p.e(f's_cmp_eq_u32 s{sOFF}, 0')
    p.e('s_cbranch_scc0 L_typeB')
    return p


def build():
    out = []
    hdr = open('gated_mix__linear_kernel_hedgehog__glu_gated_glu__prompt.s.ref').read().split('\n')
    for ln in hdr:
        if ln.startswith('; @launch'):
            out.append(f'; @launch grid=(256,1,1) block=(256,1,1) lds={LDS_BYTES}')
            break
        out.append(ln)
    out.append('.amdgcn_target "amdgcn-amd-amdhsa--gfx950"\n.text')
    out.append(f'.globl {NAME}\n.p2align 8\n.type {NAME},@function\n{NAME}:')
    cp = common_prologue()
    info = {}
    progs = {}
    for typ in 'AB':
        g = Gen(typ)
        pre = common_prologue().ins
        g.p.ins = list(pre)
        (g.prog_A if typ == 'A' else g.prog_B)()
        full, nw, nn = g.p.finish()
        cut = next(i for i, x in enumerate(full) if x.text == 's_cbranch_scc0 L_typeB') + 1
        progs[typ] = (full[:cut], full[cut:], g.p.slow)
        cnt = {}
        for x in full:
            cnt[x.kind] = cnt.get(x.kind, 0) + 1
        info[typ] = (nw, nn, cnt, g.p.now)
    assert render(progs['A'][0]) == render(progs['B'][0])
    out.append(render(progs['A'][0]))
    out.append(render(progs['A'][1]))
    out.append(''.join(progs['A'][2]))
    out.append('L_endA:\n.p2align 6\nL_typeB:')
    out.append(render(progs['B'][1]))
    out.append(''.join(progs['B'][2]))
    out.append('L_endB:\nL_exit:\n    s_endpgm')
    out.append(f'''.section .rodata,"a"
.p2align 6
.amdhsa_kernel {NAME}
  .amdhsa_next_free_vgpr 512
  .amdhsa_next_free_sgpr 102
  .amdhsa_accum_offset 256
  .amdhsa_group_segment_fixed_size 0
  .amdhsa_kernarg_size 96
  .amdhsa_user_sgpr_count 2
  .amdhsa_user_sgpr_kernarg_segment_ptr 1
  .amdhsa_system_sgpr_workgroup_id_x 1
.end_amdhsa_kernel''')
    return '\n'.join(out) + '\n', info


if __name__ == '__main__':
    dst = 'gated_mix__linear_kernel_hedgehog__glu_gated_glu__prompt.s'
    for a in sys.argv[1:]:
        if '=' in a:
            k, v = a.split('=')
            OPT[k] = int(v)
        else:
            dst = a
    txt, info = build()
    open(dst, 'w').write(txt)
    for k, v in info.items():
        print(k, v)
```
